```python
import torch

def _softmax(x, axis=-1):
    return torch.softmax(x, dim=axis)

def _gelu(x):
    return torch.nn.functional.gelu(x, approximate='tanh')

def _silu(x):
    return torch.nn.functional.silu(x)

def _sigmoid(x):
    return torch.sigmoid(x)

def _layernorm(x, axis=-1, eps=1e-05):
    m = x.mean(dim=axis, keepdim=True)
    v = x.var(dim=axis, keepdim=True, unbiased=False)
    return (x - m) / torch.sqrt(v + eps)

def _scatter_add(tgt, idx, src, axis=0):
    return tgt.clone().index_add_(axis, idx, src)

def _segment_sum(src, seg, n):
    out = torch.zeros((n,) + src.shape[1:], dtype=src.dtype)
    return out.index_add_(0, seg, src)

def _pad(x, pw):
    flat = tuple((v for pair in reversed(pw) for v in pair))
    return torch.nn.functional.pad(x, flat)
kernel_name = 'adaLN_cond__compressed_kv_cla__mixer_channel_mlp__prompt'

def setup_inputs():

    _w = lambda a: (lambda t: t.to(torch.bfloat16) if t.is_floating_point() else t)(torch.as_tensor(a))

    def _A_setup():
        B, H, Sq, Sk, D, M = (1, 32, 2048, 2048, 128, 512)
        Dc = 4 * D
        return {'x': _w((lambda *s: torch.randn(*s, dtype=torch.bfloat16) * 0.05)(B, Sq, M)), 'c_kv': _w((lambda *s: torch.randn(*s, dtype=torch.bfloat16) * 0.4)(B, Sk, Dc)), 'w_q': _w((lambda *s: torch.randn(*s, dtype=torch.bfloat16) * 3.2)(M, H, D) * M ** (-0.5)), 'w_uk': _w((lambda *s: torch.randn(*s, dtype=torch.bfloat16) * 3.2)(Dc, H, D) * Dc ** (-0.5)), 'w_uv': _w((lambda *s: torch.randn(*s, dtype=torch.bfloat16) * 0.4)(Dc, H, D) * Dc ** (-0.5)), 'w_o': _w((lambda *s: torch.randn(*s, dtype=torch.bfloat16) * 0.4)(H, D, M) * (H * D) ** (-0.5))}
    _A_in = _A_setup()

    def _B_setup():
        B, S, D, F = (1, 2048, 512, 1376)
        return {'x': _w((lambda *s: torch.randn(*s, dtype=torch.bfloat16) * 0.05)(B, S, D)), 'w1': _w((lambda *s: torch.randn(*s, dtype=torch.bfloat16) * 3.2)(D, F) * D ** (-0.5)), 'b1': _w((lambda *s: torch.randn(*s, dtype=torch.bfloat16) * 0.8)(F)), 'w2': _w((lambda *s: torch.randn(*s, dtype=torch.bfloat16) * 0.05)(F, D) * F ** (-0.5)), 'b2': _w((lambda *s: torch.randn(*s, dtype=torch.bfloat16) * 0.1)(D))}
    _B_in = _B_setup()
    return {'A_x': _A_in['x'], 'A_c_kv': _A_in['c_kv'], 'A_w_q': _A_in['w_q'], 'A_w_uk': _A_in['w_uk'], 'A_w_uv': _A_in['w_uv'], 'A_w_o': _A_in['w_o'], 'B_x': _B_in['x'], 'B_w1': _B_in['w1'], 'B_b1': _B_in['b1'], 'B_w2': _B_in['w2'], 'B_b2': _B_in['b2'], 'c': _w((lambda *s: torch.randn(*s, dtype=torch.bfloat16) * 0.1)(1, 512) * 8.0), 'w_mod': _w((lambda *s: torch.randn(*s, dtype=torch.bfloat16) * 0.1)(512, 6 * 512) * 512 ** (-0.5) * 8.0)}

def reference(A_x, A_c_kv, A_w_q, A_w_uk, A_w_uv, A_w_o, B_x, B_w1, B_b1, B_w2, B_b2, c, w_mod):

    def _A_ref(x, c_kv, w_q, w_uk, w_uv, w_o):
        B, Sq, M = (x.shape[0], x.shape[1], x.shape[2])
        Sk = c_kv.shape[1]
        H, D = (w_q.shape[1], w_q.shape[2])
        q = torch.einsum('bqm,mhd->bhqd', x, w_q)
        k = torch.einsum('bkc,chd->bhkd', c_kv, w_uk)
        v = torch.einsum('bkc,chd->bhkd', c_kv, w_uv)
        scores = torch.einsum('bhqd,bhkd->bhqk', q, k) * D ** (-0.5)
        off = Sk - Sq
        qi = torch.arange(Sq)[:, None]
        kj = torch.arange(Sk)[None, :]
        cmask = kj <= qi + off
        scores = torch.where(cmask[None, None], scores, -1000000000.0)
        p = _softmax(scores, axis=-1)
        ctx = torch.einsum('bhqk,bhkd->bhqd', p, v)
        return torch.einsum('bhqd,hdm->bqm', ctx, w_o)

    def _B_ref(x, w1, b1, w2, b2):
        y = _layernorm(x, axis=-1)
        h = _gelu(torch.einsum('bsd,df->bsf', y, w1) + b1)
        return torch.einsum('bsf,fd->bsd', h, w2) + b2
    x = A_x
    mod = (_silu(c) @ w_mod).reshape(c.shape[0], 6, 1, -1)
    sa, ca, ga, sb, cb, gb = (mod[:, 0].clone(), mod[:, 1].clone(), mod[:, 2].clone(), mod[:, 3].clone(), mod[:, 4].clone(), mod[:, 5].clone())
    h = _layernorm(x, axis=-1) * (1 + ca) + sa
    x = x + ga * _A_ref(h, A_c_kv, A_w_q, A_w_uk, A_w_uv, A_w_o)
    h = _layernorm(x, axis=-1) * (1 + cb) + sb
    x = x + gb * _B_ref(h, B_w1, B_b1, B_w2, B_b2)
    return x
```

```python
HEADER_INFO = """; Kernarg layout (128 bytes, ptrs only, base s[0:1]):
"""

class K:
    def __init__(self, name, grid, block, lds, vgpr=256, agpr=0, sgpr=102):
        self.name = name; self.grid = grid; self.block = block; self.lds = lds
        self.vgpr = vgpr; self.agpr = agpr; self.sgpr = sgpr
        self.L = []
        self._lbl = 0
    def __call__(self, s):
        for line in s.split("\n"):
            line = line.strip()
            if line:
                self.L.append(line)
    def label(self, base="L"):
        self._lbl += 1
        return f"{self.name[:-7]}_{base}{self._lbl}"
    def text(self):
        acc = (self.vgpr + 3) // 4 * 4
        nfv = acc + self.agpr if self.agpr else self.vgpr
        out = [".text", f".globl {self.name}", ".p2align 8", f".type {self.name},@function", f"{self.name}:"]
        for l in self.L:
            out.append(l if l.endswith(":") else "  " + l)
        out += ['.section .rodata,"a"', ".p2align 6", f".amdhsa_kernel {self.name}",
                f"  .amdhsa_next_free_vgpr {nfv}", f"  .amdhsa_next_free_sgpr {self.sgpr}",
                f"  .amdhsa_accum_offset {acc}", "  .amdhsa_group_segment_fixed_size 0",
                "  .amdhsa_kernarg_size 128", "  .amdhsa_user_sgpr_count 2",
                "  .amdhsa_user_sgpr_kernarg_segment_ptr 1", "  .amdhsa_system_sgpr_workgroup_id_x 1",
                "  .amdhsa_float_denorm_mode_32 3", "  .amdhsa_float_denorm_mode_16_64 3",
                ".end_amdhsa_kernel"]
        return "\n".join(out)
    def launch_line(self, grid=None):
        g = grid or self.grid
        return f"; @launch kernel={self.name} grid=({g},1,1) block=({self.block},1,1) lds={self.lds}"

def write_file(path, kernels, launches=None):
    launches = launches or kernels
    s = HEADER_INFO
    for k in launches:
        s += k.launch_line() + "\n"
    s += '.amdgcn_target "amdgcn-amd-amdhsa--gfx950"\n'
    for k in kernels:
        s += k.text() + "\n"
    open(path, "w").write(s)

ARG = dict(x=0, ckv=8, wq=16, wuk=24, wuv=32, wo=40, bx=48, w1=56, b1=64, w2=72, b2=80, c=88, wmod=96,
           out=104, dbg=112, ws=120)
SIZE = dict(x=2097152, ckv=2097152, wq=4194304, wuk=4194304, wuv=4194304, wo=4194304, bx=2097152,
            w1=512*1376*2, b1=1376*2, w2=1376*512*2, b2=1024, c=1024, wmod=512*3072*2,
            out=2097152, dbg=256, ws=268435456)

def vr(b, n=1, c="v"):
    return f"{c}{b}" if n == 1 else f"{c}[{b}:{b+n-1}]"
def ar(b, n=1):
    return vr(b, n, "a")
def sr(b, n=1):
    return vr(b, n, "s")

class KT(K):
    def __init__(self, *a, **kw):
        super().__init__(*a, **kw)
        self.dsq = []
        self.vmq = []
    def ds(self, text, tag=None):
        self(text); self.dsq.append(tag)
    def vm(self, text, tag=None):
        self(text); self.vmq.append(tag)
        assert sum(self._real(t) for t in self.vmq) <= 62, "vmcnt overflow"
    @staticmethod
    def _real(t): return not (isinstance(t, str) and t.startswith("#"))
    def _wait(self, q, tags, all_, mx):
        if all_:
            return (0 if any(self._real(t) for t in q) else None), []
        last = -1
        for i, t in enumerate(q):
            if t in tags: last = i
        if last < 0: return None, q
        rest = q[last + 1:]
        while sum(self._real(t) for t in rest) > mx: rest = rest[1:]
        return sum(self._real(t) for t in rest), rest
    def need(self, ds=(), vm=(), all_ds=False, all_vm=False):
        if not isinstance(ds, list): ds = [ds] if ds != () else []
        if not isinstance(vm, list): vm = [vm] if vm != () else []
        parts = []
        n, self.vmq = self._wait(self.vmq, vm, all_vm, 63)
        if n is not None: parts.append(f"vmcnt({n})")
        n, self.dsq = self._wait(self.dsq, ds, all_ds, 15)
        if n is not None: parts.append(f"lgkmcnt({n})")
        if parts: self("s_waitcnt " + " ".join(parts))
    def srd(self, s, ptr, size):
        self(f"s_mov_b32 s{s}, s{ptr}\ns_and_b32 s{s+1}, s{ptr+1}, 0xffff\ns_mov_b32 s{s+2}, {size}\ns_mov_b32 s{s+3}, 0x20000")
    def mfma(self, d, a, b, c=None):
        self(f"v_mfma_f32_32x32x16_bf16 {d}, {a}, {b}, {d if c is None else c}")

MB = 1 << 20
WS_KF, WS_VF, WS_CF, WS_HF, WS_X1, WS_XG, WS_H1 = 0, 16*MB, 32*MB, 48*MB, 50*MB, 52*MB, 54*MB
WS_MOD, WS_STATS, WS_UWT = 60*MB, 60*MB + 65536, 61*MB
WS_SIZE = 268435456
```

```python
from g_common import *

SB = lambda buf, tile: 32 * buf + 16 * tile
PR = lambda u, tile: 64 + 8 * u + 4 * tile
NM = lambda tile: 80 + 16 * tile
QF = lambda rs, t: 112 + 32 * rs + 4 * t
TMP = 176
LL = lambda rs, i: 180 + 2 * rs + i
NS = lambda rs: 184 + rs
V_MX, V_THR, V_TV, V_NEG, V_KA, V_VA, V_L16 = 186, 187, 188, 189, 190, 191, 208
V_T = 209
V_WA = 224
V_WS = 228
QACC = [0, 16, 32, 48, 64, 80, 96, 192]
OA = lambda rs, db: 64 * rs + 16 * db
FR = lambda slot: 128 + 4 * slot
KBASE0, KX, VBASE0, VX = 131072, 131072, 32768, 98304
S_W, S_H, S_I, S_J, S_KSRC, S_VSRC, S_KDST, S_VDST, S_MJ, S_T0, S_T1, S_ROT, S_HL, S_HS, S_WSRC, S_WDST = 40, 41, 42, 43, 44, 45, 46, 47, 48, 50, 51, 52, 53, 54, 55, 56

def gen_attn(ts=None, store_flag="sc1", thr_log2=32, dist1=4, dist2=8):
    k = KT("attn_kernel", 256, 256, 163840, vgpr=256, agpr=256)
    T = Stamps(k, ts, slot=1)
    T()
    prologue_ids(k, 256)
    k(f"""
    s_load_dwordx2 s[60:61], s[0:1], {ARG['wq']}
    s_load_dwordx2 s[62:63], s[0:1], {ARG['ws']}
    s_and_b32 s50, s2, 7
    s_lshr_b32 s51, s2, 3
    s_and_b32 s51, s51, 3
    s_lshl_b32 s50, s50, 2
    s_add_u32 s{S_H}, s50, s51
    s_lshr_b32 s{S_I}, s2, 5
    s_lshl_b32 s{S_ROT}, s51, 1
    s_add_u32 s{S_ROT}, s{S_ROT}, s{S_I}
    s_lshl_b32 s{S_WSRC}, s{S_W}, 17
    s_lshl_b32 s50, s{S_H}, 8
    s_add_u32 s{S_WSRC}, s{S_WSRC}, s50
    s_lshl_b32 s{S_WDST}, s{S_W}, 12
    s_lshl_b32 s50, s{S_I}, 2
    s_add_u32 s58, s50, s{S_W}
    s_sub_u32 s57, 60, s50
    s_add_u32 s57, s57, s{S_W}
    s_lshl_b32 s{S_HL}, s57, 15
    s_add_u32 s{S_HL}, s{S_HL}, {WS_HF}
    s_lshl_b32 s{S_HS}, s58, 15
    s_add_u32 s{S_HS}, s{S_HS}, {WS_HF}
    s_lshl_b32 s{S_KSRC}, s{S_H}, 19
    s_lshl_b32 s50, s{S_W}, 13
    s_add_u32 s{S_KSRC}, s{S_KSRC}, s50
    s_add_u32 s{S_VSRC}, s{S_KSRC}, {WS_VF - 8192}
    s_add_u32 s{S_KDST}, s50, {KBASE0}
    s_add_u32 s{S_VDST}, s50, {VBASE0}
    v_lshlrev_b32 v{V_L16}, 4, v1
    v_lshrrev_b32 v3, 4, v1
    v_and_b32 v4, 15, v1
    v_lshlrev_b32 v5, 2, v3
    v_xor_b32 v5, v5, v4
    v_lshlrev_b32 v5, 4, v5
    v_lshl_add_u32 v5, v3, 13, v5
    """)
    for i in range(4): k(f"v_add_u32 v{V_WS+i}, {i*32768 - i*1024}, v5")
    k("s_waitcnt lgkmcnt(0)")
    k.srd(8, 60, SIZE['wq']); k.srd(20, 62, WS_SIZE)
    def emit(item):
        if item[0] == "vm": k.vm(item[1], item[2])
        elif item[0] == "ds": k.ds(item[1], item[2])
        elif item[0] == "fn": item[1]()
        else: k(item[1])
    def chunk(c, dst, shift):
        return [("s", f"s_add_u32 s{dst}, s{S_ROT}, {c}"), ("s", f"s_and_b32 s{dst}, s{dst}, 7"), ("s", f"s_lshl_b32 s{dst}, s{dst}, {shift}")]
    def w_dma(c):
        g = [("s", f"s_add_u32 m0, s{S_WDST}, {c*16384}")] + chunk(c, S_T1, 19) + [("s", f"s_add_u32 s{S_T1}, s{S_T1}, s{S_WSRC}")]
        for i in range(4):
            g.append(("vm", f"buffer_load_dwordx4 v{V_WS+i}, s[8:11], s{S_T1} offen offset:{i*1024} lds", ("wq", c)))
        return g
    def hreg(rs, ks): return ((ks % 16) * 2 + rs) * 4
    def h_ld(c):
        g = chunk(c, S_T0, 12) + [("s", f"s_add_u32 s59, s{S_T0}, s{S_HL}"), ("s", f"s_add_u32 s{S_T0}, s{S_T0}, s{S_HS}")]
        for q in range(4):
            for rs in range(2):
                g.append(("vm", f"buffer_load_dwordx4 {ar(hreg(rs, 4*c+q), 4)}, v{V_L16}, s[20:23], s{59 if rs == 0 else S_T0} offen offset:{q*1024}", ("h", 4*c+q)))
        return g
    def kv_dma(src, dst, tag, adv):
        g = []
        for half in range(2):
            g.append(("s", f"s_add_u32 m0, s{dst}, {half*4096}" if half else f"s_mov_b32 m0, s{dst}"))
            g.append(("s", f"s_add_u32 s{src}, s{src}, 4096" if half else "s_nop 0"))
            for i in range(4):
                g.append(("vm", f"buffer_load_dwordx4 v{V_L16}, s[20:23], s{src} offen offset:{i*1024} lds", tag))
        g.append(("s", f"s_add_u32 s{src}, s{src}, {adv - 4096}"))
        g.append(("s", f"s_xor_b32 s{dst}, s{dst}, {KX if dst == S_KDST else VX}"))
        return g
    for it in w_dma(0) + h_ld(0) + w_dma(1) + h_ld(1): emit(it)
    k(f"""
    v_lshrrev_b32 v3, 5, v1
    v_bfe_u32 v4, v1, 2, 2
    v_lshl_add_u32 v5, v3, 3, v4
    v_lshlrev_b32 v5, 8, v5
    v_bfe_u32 v6, v1, 4, 1
    v_lshl_add_u32 v5, v6, 5, v5
    v_and_b32 v6, 3, v1
    v_lshl_add_u32 v5, v6, 3, v5
    """)
    for b in range(4):
        k(f"v_xor_b32 v6, {b}, v4")
        k(f"v_lshl_add_u32 v{V_WA+b}, v6, 6, v5")
    k(f"""
    v_and_b32 v4, 31, v1
    v_lshlrev_b32 v3, 2, v3
    v_sub_u32 v4, v4, v3
    s_lshl_b32 s50, s{S_W}, 5
    v_add_u32 v{V_TV}, s50, v4
    v_mov_b32 v{V_THR}, {f32(2.0**thr_log2)}
    v_mov_b32 v{V_NEG}, {f32(-1e30)}
    v_add_u32 v{V_KA}, {KBASE0}, v{V_L16}
    v_add_u32 v{V_VA}, {VBASE0}, v{V_L16}
    """)
    T()
    W = AddrSet(k, [V_WA + b for b in range(4)])
    def w_reads(ks):
        L = []
        for b in range(4):
            for half in range(2):
                def f(b=b, half=half):
                    o = W.off((ks // 4) * 16384 + (ks % 4) * 4096 + half * 1024)
                    r = 128 + (ks % 2) * 16 + b * 4 + half * 2
                    k.ds(f"ds_read_b64_tr_b16 a[{r}:{r+1}], v{V_WA+b} offset:{o}", ("w", ks, b))
                L.append(("fn", f))
        return L
    pend = []
    for c in (2, 3): pend += w_dma(c) + h_ld(c)
    for c in (4, 5, 6, 7): pend += w_dma(c)
    pend += kv_dma(S_KSRC, S_KDST, "K", 32768)
    k.need(vm=("wq", 0))
    k("s_barrier")
    T()
    for it in w_reads(0): emit(it)
    gap = 0; next_dma = 0.0
    BARS = {1: [1], 2: [2], 3: [3], 4: [4, 5], 6: [6, 7]}
    for ks in range(32):
        c, q = ks // 4, ks % 4
        nxt = w_reads(ks + 1) if ks < 31 else []
        bar = [("wq", x) for x in BARS[c + 1]] if (q == 3 and c + 1 in BARS) else None
        barpos = 2 if bar else -1
        if q == 0 and c >= 1 and c + 3 < 8:
            pend = h_ld(c + 3) + pend if not pend or pend[0][0] == "s" and "m0" in pend[0][1] or True and False else pend + h_ld(c + 3)
        for m in range(8):
            b, rs = m // 2, m % 2
            assert not any(it[0] == "vm" and it[2] == ("h", ks) for it in pend), ks
            k.need(ds=("w", ks, b), vm=("h", ks))
            d = vr(QACC[rs * 4 + b], 16)
            k.mfma(d, ar(128 + (ks % 2) * 16 + b * 4, 4), ar(hreg(rs, ks), 4), "0" if ks == 0 else None)
            gap += 1
            if m == barpos:
                for tg in bar: assert not any(it[0] == "vm" and it[2] == tg for it in pend), tg
                k.need(vm=bar, all_ds=True)
                k("s_barrier")
                if c + 1 == 4: pend += kv_dma(S_VSRC, S_VDST, "V", 32768)
            if m >= barpos:
                cnt = -(-len(nxt) // (8 - m)) if nxt else 0
                for _ in range(min(cnt, len(nxt))): emit(nxt.pop(0))
            if pend and gap >= next_dma:
                while pend:
                    it = pend.pop(0); emit(it)
                    if it[0] == "vm": break
                next_dma = max(next_dma + 2, gap + 1)
    while pend: emit(pend.pop(0))
    T()
    k.need(all_vm=True, all_ds=True)
    k("s_barrier")
    for t in range(8): k.ds(f"ds_read_b128 {ar(FR(t), 4)}, v{V_KA} offset:{t*1024}", ("f", t))
    for rs in range(2):
        for b in range(4):
            a0 = QACC[rs * 4 + b]
            for j in range(8): k(f"v_cvt_pk_bf16_f32 v{QF(rs, 2*b) + j}, v{a0+2*j}, v{a0+2*j+1}")
    for r in range(32): k(f"v_mov_b32 v{NM(0)+r}, 0")
    for r in (NS(0), NS(1), LL(0, 0), LL(0, 1), LL(1, 0), LL(1, 1)): k(f"v_mov_b32 v{r}, 0")
    k(f"s_mov_b32 s{S_J}, 0\ns_mov_b32 s{S_MJ}, s{S_I}")
    T()

    tail = []
    uid = [0]
    def lab(b):
        uid[0] += 1; return f"attn_{b}{uid[0]}"

    def mask_prep(tiles):
        l, r = lab("mp"), lab("mpr")
        t = [f"{l}:"]
        for tile, rs, q in tiles:
            t.append(f"v_subrev_u32 v{V_T}, {32*q}, v{V_TV}")
            for g in range(4):
                for i in range(4): t.append(f"v_cmp_le_i32 s[{64+2*i}:{65+2*i}], {8*g+i}, v{V_T}")
                for i in range(4): t.append(f"v_cndmask_b32 v{NM(tile)+4*g+i}, v{V_NEG}, v{NS(rs)}, s[{64+2*i}:{65+2*i}]")
        t += ["s_nop 1", f"s_branch {r}"]
        tail.extend(t)
        return [f"s_cmp_eq_u32 s{S_J}, s{S_MJ}", f"s_cbranch_scc1 {l}", f"{r}:"]

    def win_ops(form, buf, u):
        old, new = (0, 1) if u == 0 else (1, 0)
        ex, post = [], []
        for e in range(16):
            tile, j = e // 8, e % 8
            rs = tile if form == 1 else 0
            ex.append(f"v_exp_f32 v{TMP+e%4}, v{SB(buf, tile)+8*u+j}")
            first = (j == 0) if form == 1 else (e == 0)
            p = [f"v_add_f32 v{LL(rs, new)}, v{LL(rs, old if first else new)}, v{TMP+e%4}"]
            if j % 2: p.append(f"v_cvt_pk_bf16_f32 v{PR(u, tile)+j//2}, v{TMP+(e-1)%4}, v{TMP+e%4}")
            post.append(p)
        return ex, post
    def check(form, buf, u, nform, post15):
        old, new = (0, 1) if u == 0 else (1, 0)
        l, r = lab("rare"), lab("rr")
        ins = [post15[0]]
        if form == 1:
            ins += [f"v_max_f32 v{V_MX}, v{LL(0, new)}, v{LL(1, new)}", f"v_cmp_lt_f32 vcc, v{V_THR}, v{V_MX}"]
        else:
            ins += [f"v_cmp_lt_f32 vcc, v{V_THR}, v{LL(0, new)}"]
        ins += [post15[1], f"s_cbranch_vccnz {l}", f"{r}:"]
        t = [f"{l}:", "s_nop 15"]
        D = [V_T, V_T + 1]; X = V_T + 2; F = V_T + 3
        for tile in range(2):
            s0 = SB(buf, tile) + 8 * u; d = D[tile]
            t += [f"v_max3_f32 v{d}, v{s0}, v{s0+1}, v{s0+2}", f"v_max3_f32 v{d}, v{d}, v{s0+3}, v{s0+4}",
                  f"v_max3_f32 v{d}, v{d}, v{s0+5}, v{s0+6}", f"v_max3_f32 v{d}, v{d}, v{s0+7}, 0"]
        if form == 2: t.append(f"v_max_f32 v{D[0]}, v{D[0]}, v{D[1]}")
        for rs in range(2 if form == 1 else 1):
            d = D[rs]
            t += [f"v_log_f32 v{X}, v{LL(rs, old)}", "s_nop 0", f"v_max_f32 v{d}, v{d}, v{X}", f"v_mov_b32 v{X}, v{d}", "s_nop 1",
                  f"v_permlane32_swap_b32 v{d}, v{X}", "s_nop 1", f"v_max_f32 v{d}, v{d}, v{X}",
                  f"v_exp_f32 v{F}, -v{d}", f"v_sub_f32 v{NS(rs)}, v{NS(rs)}, v{d}",
                  f"v_mul_f32 v{LL(rs, old)}, v{LL(rs, old)}, v{F}"]
            for r0 in range(0, 64, 4):
                for i in range(4): t.append(f"v_accvgpr_read_b32 v{V_T+4+i}, a{64*rs+r0+i}")
                for i in range(4): t.append(f"v_mul_f32 v{V_T+4+i}, v{V_T+4+i}, v{F}")
                for i in range(4): t.append(f"v_accvgpr_write_b32 a{64*rs+r0+i}, v{V_T+4+i}")
        for tile in range(2):
            dc = D[tile if form == 1 else 0]
            for x in range(16): t.append(f"v_sub_f32 v{SB(buf, tile)+x}, v{SB(buf, tile)+x}, v{dc}")
            if nform:
                dn = D[tile if nform == 1 else 0]
                for x in range(16): t.append(f"v_sub_f32 v{SB(1-buf, tile)+x}, v{SB(1-buf, tile)+x}, v{dn}")
                for x in range(16): t.append(f"v_sub_f32 v{NM(tile)+x}, v{NM(tile)+x}, v{dn}")
        ex, post = win_ops(form, buf, u)
        for e in range(16): t += [ex[e], "s_nop 0"] + post[e]
        t += ["s_nop 3", f"s_branch {r}"]
        tail.extend(t)
        return ins

    class Body:
        def __init__(self):
            self.m = []
            self.frags = []
            self.pre = {}
            self.fill = {}
            self.heavy = set()
        def frag(self, areg, off):
            self.frags.append((areg, off)); return len(self.frags) - 1
        def add(self, pos, items): self.fill.setdefault(pos, []).extend(items)
        def qk(self, form, buf, slots, prep=True):
            p0 = len(self.m)
            if prep:
                tl = [(1, 1, slots[0])] if form == 1 else [(0, 0, slots[0]), (1, 0, slots[1])]
                self.pre.setdefault(p0, []).extend(mask_prep(tl))
            if form == 1:
                for t in range(8):
                    f = self.frag(V_KA, slots[0] * 8192 + t * 1024)
                    for tile in range(2):
                        d = vr(SB(buf, tile), 16); c = vr(NM(tile), 16) if t == 0 else d
                        self.m.append((d, f, vr(QF(tile, t), 4), c))
            else:
                for tile in range(2):
                    for t in range(8):
                        f = self.frag(V_KA, slots[tile] * 8192 + t * 1024)
                        d = vr(SB(buf, tile), 16); c = vr(NM(tile), 16) if t == 0 else d
                        self.m.append((d, f, vr(QF(0, t), 4), c))
        def pv(self, form, slots, first=False, us=(0, 1)):
            for u in us:
                for db in range(4):
                    if form == 1: f = self.frag(V_VA, slots[0] * 8192 + (u * 4 + db) * 1024)
                    for tile in range(2):
                        if form == 2: f = self.frag(V_VA, slots[tile] * 8192 + (u * 4 + db) * 1024)
                        d = ar(OA(tile if form == 1 else 0, db), 16)
                        self.m.append((d, f, vr(PR(u, tile), 4), "0" if (first and u == 0) else d))
        def windows(self, p0, form, buf, nform):
            ex, post = win_ops(form, buf, 0)
            for e in range(9, 16): self.add(p0 + e - 9, [ex[e]] + post[e - 1])
            ex1, post1 = win_ops(form, buf, 1)
            self.add(p0 + 7, check(form, buf, 0, nform, post[15]) + [ex1[0]]); self.heavy.add(p0 + 7)
            for e in range(1, 16): self.add(p0 + 7 + e, [ex1[e]] + post1[e - 1])
            exn, postn = win_ops(nform, 1 - buf, 0)
            self.add(p0 + 23, check(form, buf, 1, nform, post1[15]) + [exn[0]]); self.heavy.add(p0 + 23)
            for e in range(1, 9): self.add(p0 + 23 + e, [exn[e]] + postn[e - 1])
        def emit(self, dma, dist, have=8, endbar=True, dma_span=0.6, wgran=None):
            n = len(self.m); nf = len(self.frags)
            first = {}; last = {}
            for p, (_, f, _, _) in enumerate(self.m):
                first.setdefault(f, p); last[f] = p
            slot = lambda f: f if f < 8 else 8 + (f - 8) % 16
            per = n / nf
            rd = {}; g = 0
            barg = n - 4 if endbar else None
            for f in range(have, nf):
                want = max(0, first[f] - int(dist * per) - 1)
                if f >= 24: want = max(want, last[f - 16])
                if endbar: want = min(want, barg - 3)
                if f >= 24: assert want >= last[f - 16]
                g = max(g, want)
                def cap(x):
                    if x in self.heavy: return 0
                    light = len(self.fill.get(x, [])) <= 2
                    return 2 if (light and x > want) or (endbar and x >= barg - 8) else 1
                while len(rd.get(g, [])) >= cap(g): g += 1
                assert g < first[f] or first[f] == 0, (f, g, first[f])
                assert not endbar or g <= barg - 2, (f, g, barg)
                rd.setdefault(g, []).append(f)
            nv = sum(it[0] == "vm" for it in dma); dma = list(dma)
            step = dma_span * n / max(nv, 1); nxt = 1.0
            wg = wgran or 2
            for p, (d, f, b, c) in enumerate(self.m):
                for it in self.pre.get(p, []): k(it)
                if first[f] == p and any(t == ("f", f) for t in k.dsq):
                    upto = f
                    for x in range(f + 1, min(nf, f + wg)):
                        if ("f", x) in k.dsq: upto = x
                    k.need(ds=("f", upto))
                k.mfma(d, ar(FR(slot(f)), 4), b, c)
                for x in rd.get(p, []):
                    a, o = self.frags[x]
                    k.ds(f"ds_read_b128 {ar(FR(slot(x)), 4)}, v{a} offset:{o}", ("f", x))
                for it in self.fill.get(p, []): k(it)
                if dma and p >= nxt and p not in self.heavy:
                    while dma:
                        it = dma.pop(0); emit(it)
                        if it[0] == "vm": break
                    while dma and not any(x[0] == "vm" for x in dma): emit(dma.pop(0))
                    nxt += step
                if endbar and p == barg:
                    assert not dma
                    k.need(all_vm=True, all_ds=True)
                    k("s_barrier")
                    k(f"v_xor_b32 v{V_KA}, {KX}, v{V_KA}")
                    k(f"v_xor_b32 v{V_VA}, {VX}, v{V_VA}")
                if endbar and p >= barg:
                    for t in range(2 * (p - barg), 2 * (p - barg) + 2):
                        k.ds(f"ds_read_b128 {ar(FR(t), 4)}, v{V_KA} offset:{t*1024}", ("f", t))
            assert not dma
    ENTRY = [("f", t) for t in range(8)]
    def entry_state():
        assert k.dsq == ENTRY[len(ENTRY) - len(k.dsq):] and not k.vmq, (k.dsq, k.vmq)
        k.dsq = list(ENTRY)

    B = Body()
    B.qk(1, 0, [0])
    init = ["s_nop 7"]
    for tile in range(2):
        s0 = SB(0, tile); d = V_T + tile
        init.append(f"v_max3_f32 v{d}, v{s0}, v{s0+1}, v{s0+2}")
        for x in range(3, 15, 2): init.append(f"v_max3_f32 v{d}, v{d}, v{s0+x}, v{s0+x+1}")
        init.append(f"v_max_f32 v{d}, v{d}, v{s0+15}")
    init += [f"v_mov_b32 v{V_T+2}, v{V_T}", f"v_mov_b32 v{V_T+3}, v{V_T+1}", "s_nop 0",
             f"v_permlane32_swap_b32 v{V_T}, v{V_T+2}", f"v_permlane32_swap_b32 v{V_T+1}, v{V_T+3}", "s_nop 0",
             f"v_max_f32 v{V_T}, v{V_T}, v{V_T+2}", f"v_max_f32 v{V_T+1}, v{V_T+1}, v{V_T+3}"]
    for tile in range(2):
        init.append(f"v_sub_f32 v{NS(tile)}, 0, v{V_T+tile}")
        for x in range(16): init.append(f"v_sub_f32 v{SB(0, tile)+x}, v{SB(0, tile)+x}, v{V_T+tile}")
        for x in range(16): init.append(f"v_mov_b32 v{NM(tile)+x}, v{NS(tile)}")
    ex, post = win_ops(1, 0, 0)
    init.append(ex[0])
    for e in range(1, 9): init += [ex[e]] + post[e - 1]
    B.add(15, init); B.heavy.add(15)
    for x in range(3):
        p0 = len(B.m)
        B.qk(1, (x + 1) % 2, [x + 1]); B.pv(1, [x + 1], first=(x == 0)); B.windows(p0, 1, x % 2, 1)
    B.emit(kv_dma(S_KSRC, S_KDST, "K", 32768) + kv_dma(S_VSRC, S_VDST, "V", 32768), dist1)
    T()
    l_p1, l_tr, l_p2, l_dr = "attn_p1", "attn_tr", "attn_p2", "attn_drain"
    k(f"s_add_u32 s{S_J}, s{S_J}, 1\ns_cmp_gt_u32 s{S_J}, s{S_I}\ns_cbranch_scc1 {l_tr}")
    k(".p2align 4"); k(f"{l_p1}:")
    entry_state()
    B = Body()
    for x in range(4):
        p0 = len(B.m)
        B.qk(1, x % 2, [x]); B.pv(1, [x]); B.windows(p0, 1, (x + 1) % 2, 1)
    B.emit(kv_dma(S_KSRC, S_KDST, "K", 32768) + kv_dma(S_VSRC, S_VDST, "V", 32768), dist1)
    k(f"s_add_u32 s{S_J}, s{S_J}, 1\ns_cmp_le_u32 s{S_J}, s{S_I}\ns_cbranch_scc1 {l_p1}")
    k(f"{l_tr}:")
    entry_state()
    T()
    k(f"s_sub_u32 s{S_MJ}, 15, s{S_I}\ns_sub_u32 s{S_VSRC}, s{S_VSRC}, 8192")
    for x in range(16): k(f"v_mov_b32 v{NM(1)+x}, v{NS(0)}")
    B = Body()
    B.qk(2, 0, [0, 1]); B.pv(1, [0]); B.windows(0, 1, 1, 2)
    B.qk(2, 1, [2, 3]); B.pv(2, [1, 2]); B.windows(32, 2, 0, 2)
    B.emit(kv_dma(S_KSRC, S_KDST, "K", 32768) + kv_dma(S_VSRC, S_VDST, "V", 32768), dist2, wgran=4)
    k(f"s_add_u32 s{S_J}, s{S_J}, 1\ns_cmp_gt_u32 s{S_J}, s{S_MJ}\ns_cbranch_scc1 {l_dr}")
    k(".p2align 4"); k(f"{l_p2}:")
    entry_state()
    B = Body()
    B.qk(2, 0, [0, 1]); B.pv(2, [0, 1]); B.windows(0, 2, 1, 2)
    B.qk(2, 1, [2, 3]); B.pv(2, [2, 3]); B.windows(32, 2, 0, 2)
    B.emit(kv_dma(S_KSRC, S_KDST, "K", 32768) + kv_dma(S_VSRC, S_VDST, "V", 32768), dist2, wgran=4)
    k(f"s_add_u32 s{S_J}, s{S_J}, 1\ns_cmp_le_u32 s{S_J}, s{S_MJ}\ns_cbranch_scc1 {l_p2}")
    k(f"{l_dr}:")
    entry_state()
    T()
    B = Body()
    B.pv(2, [0, 1])
    for x in range(16):
        a, o = B.frags[x]
        k.ds(f"ds_read_b128 {ar(FR(8 + x), 4)}, v{a} offset:{o}", ("v", x))
    ex, post = win_ops(2, 1, 0)
    for e in range(9, 16): k(ex[e]); [k(x) for x in post[e - 1]]
    k("s_nop 0")
    for it in check(2, 1, 0, None, post[15]): k(it)
    ex1, post1 = win_ops(2, 1, 1)
    k(ex1[0])
    e = 1
    def epi(rs, rb_sgpr):
        L = LL(rs, 0); X = V_T + 8
        ops = [f"v_mov_b32 v{X}, v{L}", "s_nop 1", f"v_permlane32_swap_b32 v{L}, v{X}", "s_nop 1", f"v_add_f32 v{L}, v{L}, v{X}",
               f"v_rcp_f32 v{L}, v{L}", f"s_lshl_b32 s50, s{rb_sgpr}, 18", f"s_lshl_b32 s51, s{S_H}, 13", "s_add_u32 s50, s50, s51",
               f"s_add_u32 s50, s50, {WS_CF}", f"s_add_u32 s51, s50, 4096"]
        for t in range(8):
            w0 = 112 + 32 * (1 - rs) * 0 + (t % 2) * 8 + (0 if rs else 16)
            w0 = (0 if rs else 16) + (t % 2) * 8
            o = 144 + 4 * t if rs else 112 + 4 * t
            for i in range(8): ops.append(f"v_accvgpr_read_b32 v{w0+i}, a{64*rs+8*t+i}")
            for i in range(8): ops.append(f"v_mul_f32 v{w0+i}, v{w0+i}, v{L}")
            for i in range(4): ops.append(f"v_cvt_pk_bf16_f32 v{o+i}, v{w0+2*i}, v{w0+2*i+1}")
            ops.append(f"buffer_store_dwordx4 v[{o}:{o+3}], v{V_L16}, s[20:23], s{50 + t//4} offen offset:{(t%4)*1024} {store_flag}")
        return ops
    eS = epi(1, 58)
    for p, (d, f, b, c) in enumerate(B.m):
        if p == 8:
            k("s_nop 0")
            for it in check(2, 1, 1, None, post1[15]): k(it)
            k("s_nop 0")
        k.need(ds=("v", f))
        k.mfma(d, ar(FR(8 + f), 4), b, c)
        if p < 8:
            for _ in range(2):
                if e < 16: k(ex1[e]); [k(x) for x in post1[e - 1]]; e += 1
        else:
            for _ in range(6):
                if eS: k(eS.pop(0))
    for x in eS: k(x)
    for x in epi(0, 57): k(x)
    T()
    if ts: k("s_waitcnt vmcnt(0)")
    T()
    T.dump(20)
    k(f"{k.name}_end:")
    k("s_endpgm")
    for x in tail: k(x)
    return k

if __name__ == "__main__":
    from g_kv import gen_kv
    write_file("at.s", [gen_kv(), gen_attn()])
    write_file("at_rt.s", [gen_kv(), gen_attn(ts="rt")])
    write_file("at_cy.s", [gen_kv(), gen_attn(ts="cy")])
    write_file("at_thr.s", [gen_kv(), gen_attn(thr_log2=1)])
```

```python
from asmlib import *
import math
QSCALE = math.log2(math.e) / math.sqrt(128.0)
import struct
def f32(x):
    return "0x%08x" % struct.unpack("<I", struct.pack("<f", x))[0]

class AddrSet:
    def __init__(self, k, regs, base=0):
        self.k = k; self.regs = regs; self.base = base
    def off(self, target, span=0):
        if not (0 <= target - self.base and target + span - self.base <= 65535):
            nb = target
            d = nb - self.base
            for r in self.regs:
                self.k(f"v_add_u32 v{r}, {d & 0xffffffff:#x}, v{r}")
            self.base = nb
        return target - self.base

def prologue_ids(k, grid):
    k(f"""
    s_cmp_ge_u32 s2, {grid}
    s_cbranch_scc1 {k.name}_end
    v_lshrrev_b32 v2, 6, v0
    v_and_b32 v1, 63, v0
    v_readfirstlane_b32 s40, v2
    """)

def allreduce32(k, v, t, op="v_add_f32"):
    for m in ("quad_perm:[1,0,3,2]", "quad_perm:[2,3,0,1]", "row_half_mirror", "row_mirror"):
        k("s_nop 1")
        k(f"{op}_dpp v{v}, v{v}, v{v} {m} row_mask:0xf bank_mask:0xf")
    k(f"v_mov_b32 v{t}, v{v}")
    k("s_nop 1")
    k(f"v_permlane16_swap_b32 v{v}, v{t}")
    k("s_nop 1")
    k(f"{op} v{v}, v{v}, v{t}")

def unpack8(k, dst, src):
    for j in range(4):
        k(f"v_lshlrev_b32 v{dst+2*j}, 16, v{src+j}")
        k(f"v_and_b32 v{dst+2*j+1}, 0xffff0000, v{src+j}")

WS_TS = 128 * MB
class Stamps:
    def __init__(self, k, on, first=76, maxn=12, slot=0):
        self.k = k; self.on = on; self.first = first; self.n = 0; self.maxn = maxn; self.slot = slot
    def __call__(self):
        if not self.on: return
        assert self.n < self.maxn
        r = self.first + 2 * self.n
        self.k(f"s_memrealtime s[{r}:{r+1}]" if self.on == "rt" else f"s_memtime s[{r}:{r+1}]")
        self.n += 1
    def dump(self, ws_srd, wave_sgpr=40):
        if not self.on: return
        k = self.k
        k("s_waitcnt lgkmcnt(0)")
        k(f"s_lshl_b32 s4, s2, 2\ns_add_u32 s4, s4, s{wave_sgpr}\ns_lshl_b32 s4, s4, 6\ns_add_u32 s4, s4, {WS_TS + self.slot * 0x10000}")
        k("v_mov_b32 v0, 0\ns_mov_b64 exec, 1")
        for i in range(self.n):
            k(f"v_mov_b32 v1, s{self.first + 2*i}")
            k(f"buffer_store_dword v1, v0, s[{ws_srd}:{ws_srd+3}], s4 offen offset:{4*i}")
        k("s_mov_b64 exec, -1")
```

```python
from g_common import *

class Side:
    def __init__(self, k): self.k = k; self.items = []
    def __call__(self, s):
        for line in s.split("\n"):
            line = line.strip()
            if line and not line.startswith("s_nop"): self.items.append(("v", line))
            elif line: self.items.append(("gap", line))
    def atom(self, s): self.items.append(("atom", s))
    def fn(self, f): self.items.append(("fn", f))
    def mark(self, name): self.items.append(("mark", name))

def gen_kv(store_flag="sc1", ts=None, rot=True, dma_gap=2.5, st_gap=8):
    k = KT("kv_kernel", 256, 256, 163840, vgpr=256, agpr=256)
    T = Stamps(k, ts)
    T()
    prologue_ids(k, 256)
    k(f"""
    s_load_dwordx4 s[60:63], s[0:1], 0
    s_load_dwordx4 s[64:67], s[0:1], 24
    s_load_dwordx4 s[68:71], s[0:1], 88
    s_load_dwordx4 s[72:75], s[0:1], 112
    s_and_b32 s43, s2, 7
    s_lshr_b32 s49, s2, 3
    s_and_b32 s58, s49, 3
    s_lshl_b32 s50, s43, 2
    s_add_u32 s41, s58, s50
    s_lshr_b32 s42, s2, 5
    s_lshl_b32 s44, s42, 18
    s_lshl_b32 s50, s40, 16
    s_add_u32 s44, s44, s50
    s_lshl_b32 s45, s40, 17
    s_lshl_b32 s50, s41, 8
    s_add_u32 s45, s45, s50
    s_lshl_b32 s46, s40, 13
    s_lshl_b32 s47, s40, 12
    s_lshl_b32 s48, s41, 19
    s_lshl_b32 s50, s42, 16
    s_add_u32 s48, s48, s50
    s_lshl_b32 s50, s40, 14
    s_add_u32 s48, s48, s50
    s_lshl_b32 s58, s58, 1
    s_add_u32 s58, s58, s42
    """)
    if not rot: k("s_mov_b32 s58, 0")
    k(f"""
    v_lshlrev_b32 v2, 4, v1
    v_lshrrev_b32 v28, 3, v1
    v_lshrrev_b32 v29, 4, v1
    v_and_b32 v30, 7, v1
    """)
    for i in range(4):
        k(f"v_add_u32 v31, {4*(i&1)}, v29")
        k(f"v_xor_b32 v31, v31, v30")
        k(f"v_lshlrev_b32 v31, 4, v31")
        k(f"v_lshl_add_u32 v31, v28, 10, v31")
        k(f"v_add_u32 v{4+i}, {i*8192 - i*1024}, v31")
    k(f"""
    v_and_b32 v30, 15, v1
    v_lshlrev_b32 v31, 2, v29
    v_xor_b32 v31, v31, v30
    v_lshlrev_b32 v31, 4, v31
    v_lshl_add_u32 v31, v29, 13, v31
    """)
    for i in range(4):
        k(f"v_add_u32 v{8+i}, {i*32768 - i*1024}, v31")
    k("s_waitcnt lgkmcnt(0)")
    k.srd(8, 62, SIZE['ckv']); k.srd(12, 64, SIZE['wuk'])

    def chunk(c, dst, shift, base):
        return [("s", f"s_add_u32 s{dst}, s58, {c}"), ("s", f"s_and_b32 s{dst}, s{dst}, 7"),
                ("s", f"s_lshl_b32 s{dst}, s{dst}, {shift}"), ("s", f"s_add_u32 s{dst}, s{dst}, s{base}")]
    def act_dma(c):
        base = (c % 3) * 49152
        out = chunk(c, 50, 7, 44)
        for half in range(2):
            out += [("s", f"s_add_u32 m0, s46, {base + half*4096}")]
            out += [("s", "s_add_u32 s50, s50, 32768" if half else "s_nop 0")]
            for i in range(4):
                out.append(("vm", f"buffer_load_dwordx4 v{4+i}, s[8:11], s50 offen offset:{i*1024} lds", ("st", c)))
        return out
    def w_dma(srd, c, ldsbase, tag):
        g = [("s", f"s_add_u32 m0, s47, {ldsbase}")] + chunk(c, 51, 19, 45)
        for i in range(4):
            g.append(("vm", f"buffer_load_dwordx4 v{8+i}, s[{srd}:{srd+3}], s51 offen offset:{i*1024} lds", tag))
        return g
    def emit(item):
        if item[0] == "vm": k.vm(item[1], item[2])
        elif item[0] == "ds": k.ds(item[1], item[2])
        elif item[0] == "fn": item[1]()
        else: k(item[1])
    def wk_slot(c): return (c % 3) * 49152 + 32768
    WV_SLOT = [147456, 98304, 114688, 131072, 0, 16384, 32768, 49152]
    for it in w_dma(12, 0, wk_slot(0), ("st", 0)) + act_dma(0): emit(it)
    k.srd(24, 60, SIZE['x']); k.srd(16, 66, SIZE['wuv'])
    k.srd(32, 68, SIZE['c']); k.srd(28, 70, SIZE['wmod']); k.srd(36, 72, 256); k.srd(20, 74, WS_SIZE)
    k(f"""
    v_and_b32 v28, 31, v1
    v_lshrrev_b32 v29, 5, v1
    v_bfe_u32 v30, v1, 1, 3
    v_xor_b32 v30, v30, v29
    v_lshlrev_b32 v28, 7, v28
    v_add_u32 v28, s46, v28
    """)
    for s in range(4):
        k(f"v_xor_b32 v31, {2*s}, v30")
        k(f"v_lshl_add_u32 v{12+s}, v31, 4, v28")
    k(f"""
    v_bfe_u32 v30, v1, 2, 2
    v_lshl_add_u32 v28, v29, 3, v30
    v_lshlrev_b32 v28, 8, v28
    v_bfe_u32 v31, v1, 4, 1
    v_lshl_add_u32 v28, v31, 5, v28
    v_and_b32 v31, 3, v1
    v_lshl_add_u32 v28, v31, 3, v28
    """)
    for b in range(4):
        k(f"v_xor_b32 v31, {b}, v30")
        k(f"v_lshl_add_u32 v{16+b}, v31, 6, v28")
    for it in w_dma(12, 1, wk_slot(1), ("st", 1)) + act_dma(1): emit(it)
    T()

    k(f"""
    v_and_b32 v102, 31, v1
    v_lshlrev_b32 v102, 4, v102
    v_lshl_add_u32 v102, v29, 10, v102
    s_lshl_b32 s59, s2, 13
    s_lshl_b32 s51, s40, 11
    s_add_u32 s59, s59, s51
    v_lshlrev_b32 v103, 2, v0
    s_mul_i32 s52, s43, 384
    s_mul_i32 s51, s49, 12
    s_add_u32 s52, s52, s51
    s_lshl_b32 s3, s52, 1
    v_mul_u32_u24 v104, 12288, v0
    v_add_u32 v105, 6144, v104
    """)
    side_loads = [("vm", "buffer_load_dwordx4 v[64:67], v102, s[24:27], s59 offen", "x"),
                  ("vm", "buffer_load_dwordx4 v[68:71], v102, s[24:27], s59 offen offset:512", "x"),
                  ("vm", "buffer_load_dword v88, v103, s[32:35], 0 offen", "c"),
                  ("vm", "buffer_load_dwordx3 v[90:92], v104, s[28:31], s3 offen", "wm"),
                  ("vm", "buffer_load_dwordx3 v[106:108], v104, s[28:31], s3 offen offset:12", "wm"),
                  ("vm", "buffer_load_dwordx3 v[96:98], v105, s[28:31], s3 offen", "wm"),
                  ("vm", "buffer_load_dwordx3 v[110:112], v105, s[28:31], s3 offen offset:12", "wm")]
    W0 = [90, 91, 92, 106, 107, 108]; W1 = [96, 97, 98, 110, 111, 112]
    S = Side(k)
    S.fn(lambda: k.need(vm=["c", "wm", "x"]))
    S(f"""
    v_lshlrev_b32 v114, 16, v88
    v_and_b32 v115, 0xffff0000, v88
    v_mul_f32 v116, {f32(-math.log2(math.e))}, v114
    v_mul_f32 v117, {f32(-math.log2(math.e))}, v115
    v_exp_f32 v116, v116
    v_exp_f32 v117, v117
    s_nop 0
    v_add_f32 v116, 1.0, v116
    v_add_f32 v117, 1.0, v117
    v_rcp_f32 v116, v116
    v_rcp_f32 v117, v117
    s_nop 0
    v_mul_f32 v114, v114, v116
    v_mul_f32 v115, v115, v117
    v_cvt_pk_bf16_f32 v116, v114, v115
    v_lshlrev_b32 v114, 16, v116
    v_and_b32 v115, 0xffff0000, v116
    """)
    for j in range(6):
        S(f"v_lshlrev_b32 v116, 16, v{W0[j]}")
        S(f"v_and_b32 v117, 0xffff0000, v{W0[j]}")
        S(f"v_lshlrev_b32 v118, 16, v{W1[j]}")
        S(f"v_and_b32 v119, 0xffff0000, v{W1[j]}")
        S(f"v_mul_f32 v{72+2*j}, v114, v116")
        S(f"v_mul_f32 v{73+2*j}, v114, v117")
        S(f"v_fmac_f32 v{72+2*j}, v115, v118")
        S(f"v_fmac_f32 v{73+2*j}, v115, v119")
    S("s_nop 1")
    for m in ("row_shr:1 row_mask:0xf bank_mask:0xf bound_ctrl:0", "row_shr:2 row_mask:0xf bank_mask:0xf bound_ctrl:0",
              "row_shr:4 row_mask:0xf bank_mask:0xf bound_ctrl:0", "row_shr:8 row_mask:0xf bank_mask:0xf bound_ctrl:0",
              "row_bcast:15 row_mask:0xa bank_mask:0xf", "row_bcast:31 row_mask:0xc bank_mask:0xf"):
        for j in range(12): S(f"v_add_f32_dpp v{72+j}, v{72+j}, v{72+j} {m}")
    S("s_lshl_b32 s4, s40, 6\ns_add_u32 s4, s4, 147456\nv_mov_b32 v114, s4")
    def modp():
        k("s_mov_b32 exec_lo, 0\ns_mov_b32 exec_hi, 0x80000000")
        for j in range(3): k.ds(f"ds_write_b128 v114, v[{72+4*j}:{75+4*j}] offset:{16*j}", "modp")
        k("s_mov_b64 exec, -1")
    S.fn(modp)
    S.mark("modp")
    X = 72
    S.fn(lambda: k.need(ds="modp"))
    unpack8(S, X, 64); unpack8(S, X + 8, 68)
    S(f"v_add_f32 v64, v{X}, v{X+1}")
    for j in range(2, 16): S(f"v_add_f32 v64, v64, v{X+j}")
    allreduce32(S, 64, 65)
    S(f"v_mul_f32 v64, {f32(1/512)}, v64")
    for j in range(16): S(f"v_sub_f32 v{X+j}, v{X+j}, v64")
    S(f"v_mul_f32 v66, v{X}, v{X}")
    for j in range(1, 16): S(f"v_fmac_f32 v66, v{X+j}, v{X+j}")
    allreduce32(S, 66, 65)
    S(f"v_mov_b32 v67, {f32(1e-5)}")
    S(f"v_fmac_f32 v67, {f32(1/512)}, v66")
    S("v_rsq_f32 v67, v67")
    S("s_nop 0")
    for j in range(16): S(f"v_mul_f32 v{X+j}, v{X+j}, v67")
    for j in range(8): S(f"v_cvt_pk_bf16_f32 v{20+j}, v{X+2*j}, v{X+1+2*j}")
    side1 = S.items

    def mod_finish():
        l_nomod = k.label("nomod")
        k(f"""
        s_cmp_lg_u32 s40, 0
        s_cbranch_scc1 {l_nomod}
        v_lshlrev_b32 v114, 2, v1
        v_add_u32 v114, 147456, v114
        ds_read_b32 v115, v114
        ds_read_b32 v116, v114 offset:64
        ds_read_b32 v117, v114 offset:128
        ds_read_b32 v118, v114 offset:192
        v_add_u32 v119, s52, v1
        v_lshrrev_b32 v120, 9, v119
        v_cmp_eq_u32 s[54:55], 1, v120
        v_cmp_eq_u32 s[56:57], 4, v120
        s_waitcnt lgkmcnt(0)
        v_add_f32 v115, v115, v116
        v_add_f32 v117, v117, v118
        v_add_f32 v115, v115, v117
        v_cvt_pk_bf16_f32 v115, v115, v115
        v_lshlrev_b32 v115, 16, v115
        v_add_f32 v116, 1.0, v115
        v_cvt_pk_bf16_f32 v116, v116, v116
        v_lshlrev_b32 v116, 16, v116
        s_or_b64 s[54:55], s[54:55], s[56:57]
        v_cndmask_b32 v115, v115, v116, s[54:55]
        v_lshlrev_b32 v119, 2, v119
        s_mov_b32 s53, {WS_MOD}
        s_mov_b64 exec, 0xfff
        buffer_store_dword v115, v119, s[20:23], s53 offen sc1
        s_mov_b64 exec, -1
        {l_nomod}:
        """)
        k.vmq.append("#modst")
    def publish():
        assert "#modst" not in k.vmq
        lf = k.label("noflag")
        k(f"""
        s_cmp_lg_u32 s40, 0
        s_cbranch_scc1 {lf}
        v_mov_b32 v28, 1
        v_mov_b32 v29, 0
        s_mov_b64 exec, 1
        buffer_atomic_add v28, v29, s[36:39], 0 offen
        s_mov_b64 exec, -1
        {lf}:
        """)

    S = Side(k)
    lp = k.label("poll"); lo = k.label("pollok")
    S("v_mov_b32 v29, 0")
    S.fn(lambda: k.vm("buffer_load_dword v28, v29, s[36:39], 0 offen sc1", "flag"))
    S("v_and_b32 v184, 31, v1\nv_lshlrev_b32 v185, 5, v184")
    unpack8(S, 160, 20); unpack8(S, 168, 24)
    S(f"""
    v_lshrrev_b32 v30, 1, v184
    v_lshlrev_b32 v30, 10, v30
    v_and_b32 v31, 1, v184
    v_lshl_add_u32 v30, v31, 9, v30
    v_lshrrev_b32 v31, 5, v1
    v_lshl_add_u32 v30, v31, 4, v30
    s_lshr_b32 s50, s2, 2
    s_lshl_b32 s50, s50, 15
    s_and_b32 s51, s2, 3
    s_lshl_b32 s51, s51, 7
    s_add_u32 s50, s50, s51
    s_lshl_b32 s51, s40, 5
    s_add_u32 s50, s50, s51
    s_add_u32 s50, s50, {WS_HF}
    s_add_u32 s51, s50, 16384
    s_mov_b32 s5, {f32(QSCALE)}
    s_mov_b32 s6, {WS_MOD}
    """)
    for _ in range(12): S("s_nop 0")
    def pollchk():
        k.need(vm="flag")
        k(f"""
        v_readfirstlane_b32 s55, v28
        s_cmp_ge_u32 s55, 256
        s_cbranch_scc0 {lp}
        {lo}:
        """)
    S.fn(pollchk)
    for pi in range(2):
        for vec in range(2):
            for hh in range(2):
                r = 128 + pi * 16 + vec * 8 + hh * 4
                S.fn(lambda r=r, o=vec*2048 + pi*1024 + hh*16: k.vm(f"buffer_load_dwordx4 v[{r}:{r+3}], v185, s[20:23], s6 offen offset:{o} sc1", "mod"))
    for _ in range(24): S("s_nop 0")
    S.fn(lambda: k.need(vm="mod"))
    for pi in range(2):
        for j in range(8):
            S(f"v_fma_f32 v{160+pi*8+j}, v{160+pi*8+j}, v{128+pi*16+8+j}, v{128+pi*16+j}")
            S(f"v_mul_f32 v{160+pi*8+j}, s5, v{160+pi*8+j}")
    for j in range(8): S(f"v_cvt_pk_bf16_f32 v{176+j}, v{160+2*j}, v{161+2*j}")
    S.fn(lambda: k.vm("buffer_store_dwordx4 v[176:179], v30, s[20:23], s50 offen", "h"))
    S.fn(lambda: k.vm("buffer_store_dwordx4 v[180:183], v30, s[20:23], s51 offen", "h"))
    side2 = S.items

    A = AddrSet(k, [12, 13, 14, 15]); W = AddrSet(k, [16, 17, 18, 19])
    def act_reg(s, ks): return (s * 32 + ks) * 4
    def act_read(ks, s):
        c, q = ks // 4, ks % 4
        def f():
            o = A.off((c % 3) * 49152 + s * 4096)
            k.ds(f"ds_read_b128 {ar(act_reg(s, ks), 4)}, v{12+q} offset:{o}", ("act", ks))
        return ("fn", f)
    def w_read(step, slot, q, b, half, buf, bi):
        def f():
            o = W.off(slot + q * 4096 + half * 1024)
            r = 32 + buf * 16 + bi * 4 + half * 2
            k.ds(f"ds_read_b64_tr_b16 v[{r}:{r+1}], v{16+b} offset:{o}", ("w", step, bi))
        return ("fn", f)
    steps = [(0, ks) for ks in range(32)] + [(1, ks) for ks in range(32)] + [(2, ks) for ks in range(32)]
    blocks = {0: [0, 1, 2, 3], 1: [0, 1], 2: [2, 3]}
    def reads_for(n):
        p, ks = steps[n]; c, q = ks // 4, ks % 4
        slot = wk_slot(c) if p == 0 else WV_SLOT[c]
        L = []
        if p == 0: L += [act_read(ks, 0), act_read(ks, 1)]
        for bi, b in enumerate(blocks[p]):
            L += [w_read(n, slot, q, b, 0, n % 2, bi), w_read(n, slot, q, b, 1, n % 2, bi)]
        return L
    def acc(p, bi, s):
        b = blocks[p][bi]
        return 128 + (b * 2 + s) * 16
    def out_items(p):
        G = []
        for bi, b in enumerate(blocks[p]):
            for s in range(2):
                a0 = acc(p, bi, s); t0 = 64 + (b * 2 + s) * 8
                cv = [("v", f"v_cvt_pk_bf16_f32 v{t0+j}, v{a0+2*j}, v{a0+2*j+1}") for j in range(8)]
                st = []
                for half in range(2):
                    if p == 0: off = s * 8192 + (2 * b + half) * 1024
                    else: off = WS_VF + s * 8192 + (half * 4 + b) * 1024
                    st.append([("s", f"s_add_u32 s53, s48, {off}"),
                               ("vm", f"buffer_store_dwordx4 v[{t0+4*half}:{t0+4*half+3}], v2, s[20:23], s53 offen {store_flag}", "out")])
                G.append((cv, st))
        return G
    k.need(vm=("st", 0))
    k("s_barrier")
    T()
    for it in reads_for(0): emit(it)
    pend = w_dma(12, 2, wk_slot(2), ("st", 2)) + act_dma(2) + side_loads
    cvq = []; stq = []; side = []; marks = set()
    gap = 0; next_dma = 0.0; next_st = 0
    state = dict(mod=0)
    WV_BAR = {0: [0, 1, 2, 3], 3: [4, 5, 6], 6: [7]}
    for n, (p, ks) in enumerate(steps):
        c, q = ks // 4, ks % 4
        nb = len(blocks[p]); nm = 2 * nb
        nxt = reads_for(n + 1) if n + 1 < len(steps) else []
        bar = None
        if n + 1 < len(steps) and q == 3:
            p2, ks2 = steps[n + 1]
            if p2 == 0: bar = [("st", ks2 // 4)]
            elif p2 == 1 and ks2 // 4 in WV_BAR: bar = [("wv", j) for j in WV_BAR[ks2 // 4]]
        barpos = (2 if nm == 8 else 1) if bar else -1
        if p == 0 and ks == 8: side = side1
        if p == 2 and ks == 3: assert not side and not cvq; side = side2
        for m in range(nm):
            bi, s = m // 2, m % 2
            k.need(ds=[("w", n, bi)] + ([("act", ks)] if p == 0 else []))
            wf = vr(32 + (n % 2) * 16 + bi * 4, 4); af = ar(act_reg(s, ks), 4); d = vr(acc(p, bi, s), 16)
            if ks == 0 and p == 1:
                while cvq and cvq[0][1] <= m: emit(cvq.pop(0)[0])
            if p == 0: k.mfma(d, wf, af, "0" if ks == 0 else None)
            else: k.mfma(d, af, wf, "0" if ks == 0 else None)
            gap += 1
            if m == barpos:
                for tg in bar: assert not any(it[0] == "vm" and it[2] == tg for it in pend), (tg, n)
                k.need(vm=bar, all_ds=True)
                k("s_barrier")
                if p == 0:
                    if c + 3 < 8: pend += w_dma(12, c + 3, wk_slot(c + 3), ("st", c + 3)) + act_dma(c + 3)
                    if state["mod"] == 1 and "#modst" not in k.vmq: publish(); state["mod"] = 2
                    if state["mod"] == 0 and "modp" in marks: mod_finish(); state["mod"] = 1
                    if c == 5:
                        assert state["mod"] >= 1
                        for j in (0, 1, 2, 3): pend += w_dma(16, j, WV_SLOT[j], ("wv", j))
                    if c == 6:
                        for j in (4, 5, 6): pend += w_dma(16, j, WV_SLOT[j], ("wv", j))
                    if c == 7: pend += w_dma(16, 7, WV_SLOT[7], ("wv", 7))
            used = 0
            if m >= barpos:
                left = nm - m
                cnt = -(-len(nxt) // left) if nxt else 0
                for _ in range(min(cnt, len(nxt))): emit(nxt.pop(0)); used += 1
            if pend and gap >= next_dma:
                while pend:
                    it = pend.pop(0); emit(it); used += 1
                    if it[0] == "vm": break
                next_dma = max(next_dma + dma_gap, gap + 1)
            while cvq and used < 6 and cvq[0][2] <= (n, m): emit(cvq.pop(0)[0]); used += 1
            if stq and not cvq and gap >= next_st:
                for it in stq.pop(0): emit(it); used += 1
                next_st = gap + st_gap
            while side and used < 5:
                it = side.pop(0)
                if it[0] == "mark": marks.add(it[1]); continue
                if it[0] == "gap":
                    if it[1] != "s_nop 0": k("s_nop 0")
                    break
                emit(it); used += 1
        if ks == 31 or (p == 0 and ks == 15): T()
        if ks == 31:
            G = out_items(p)
            assert state["mod"] == 2 and not side, (state, len(side))
            if n + 1 < len(steps):
                while stq:
                    for it in stq.pop(0): emit(it)
                for ti, (cv, st) in enumerate(G):
                    for it in cv: cvq.append((it, ti if p == 0 else 99, (n + 1, 0 if ti < len(G) - 2 else 1)))
                for cv, st in G: stq += st
            else:
                assert not cvq and not pend
                while stq:
                    for it in stq.pop(0): emit(it)
                k("s_nop 7")
                for cv, st in G:
                    for it in cv: emit(it)
                    for g in st:
                        for it in g: emit(it)
    T()
    if ts: k("s_waitcnt vmcnt(0)")
    T()
    T.dump(20)
    k(f"{k.name}_end:")
    k("s_endpgm")
    k(f"""
    {lp}:
    s_mov_b32 s54, 0
    {lp}_l:
    s_sleep 8
    buffer_load_dword v28, v29, s[36:39], 0 offen sc1
    s_waitcnt vmcnt(0)
    v_readfirstlane_b32 s55, v28
    s_add_u32 s54, s54, 1
    s_cmp_ge_u32 s55, 256
    s_cbranch_scc1 {lo}
    s_cmp_lt_u32 s54, 0x40000
    s_cbranch_scc1 {lp}_l
    s_branch {lo}
    """)
    return k
if __name__ == "__main__":
    import sys
    write_file("kv.s", [gen_kv()])
    write_file("kv_rt.s", [gen_kv(ts="rt")])
    write_file("kv_cy.s", [gen_kv(ts="cy")])
    write_file("kv_cy2.s", [gen_kv(ts="cy", store_flag="")])
    write_file("kv2.s", [gen_kv(store_flag="")])
```

```python
from g_common import *
from g_kv import Side

def gen_t64(kind, ts=None, ring=8):
    op = kind == "oproj"
    k = KT(f"{kind}_kernel", 256, 256, 131072 + 1024, vgpr=256, agpr=256)
    T = Stamps(k, ts, slot=2 if op else 4)
    T()
    prologue_ids(k, 256)
    NST = 64 if op else 22
    NKS = 256 if op else 86
    k(f"""
    s_load_dwordx2 s[60:61], s[0:1], {ARG['wo'] if op else ARG['w2']}
    s_load_dwordx2 s[62:63], s[0:1], {ARG['ws']}
    s_load_dwordx2 s[64:65], s[0:1], {ARG['x'] if op else ARG['out']}
    s_load_dwordx2 s[66:67], s[0:1], {ARG['w1'] if op else ARG['b2']}
    s_load_dwordx2 s[68:69], s[0:1], {ARG['b1']}
    s_and_b32 s50, s2, 7
    s_lshr_b32 s51, s2, 3
    s_and_b32 s42, s51, 7
    s_lshr_b32 s52, s51, 3
    s_lshl_b32 s41, s50, 2
    s_add_u32 s41, s41, s52
    s_lshl_b32 s43, s52, 1
    s_add_u32 s43, s43, s42
    s_mul_i32 s44, s41, {2*NKS*1024}
    s_mul_i32 s53, s40, {NST*1024}
    s_add_u32 s44, s44, s53
    s_lshl_b32 s45, s42, 7
    s_mul_i32 s53, s40, {NST*16*1024}
    s_add_u32 s45, s45, s53
    s_lshl_b32 s46, s40, 14
    v_lshlrev_b32 v2, 4, v1
    v_add_u32 v3, {NKS*1024}, v2
    v_lshrrev_b32 v10, 3, v1
    v_and_b32 v11, 7, v1
    v_bfe_u32 v12, v1, 4, 1
    v_lshlrev_b32 v13, 2, v12
    v_xor_b32 v11, v11, v13
    v_lshlrev_b32 v11, 4, v11
    v_lshl_add_u32 v4, v10, 10, v11
    v_add_u32 v5, {8192-1024}, v4
    s_waitcnt lgkmcnt(0)
    """)
    k.srd(8, 60, SIZE['wo'] if op else SIZE['w2'])
    k.srd(20, 62, WS_SIZE)
    k(f"s_add_u32 s12, s62, {WS_CF if op else WS_H1}\ns_addc_u32 s13, s63, 0\ns_and_b32 s13, s13, 0xffff\ns_mov_b32 s14, {64*NKS*1024}\ns_mov_b32 s15, 0x20000")
    def emit(item):
        if item[0] == "vm": k.vm(item[1], item[2])
        elif item[0] == "ds": k.ds(item[1], item[2])
        elif item[0] == "fn": item[1]()
        else: k(item[1])
    ACT = lambda n, s: 64 + ((n % ring) * 2 + s) * 4
    def loads(n):
        g = []
        if op and n % 8 == 0:
            g += [("s", f"s_add_u32 s53, s43, {n//8}"), ("s", "s_and_b32 s53, s53, 7"), ("s", "s_lshl_b32 s47, s53, 13"),
                  ("s", "s_add_u32 s47, s47, s44"), ("s", "s_lshl_b32 s48, s53, 17"), ("s", "s_add_u32 s48, s48, s45")]
        elif n == 0:
            g += [("s", "s_mov_b32 s47, s44"), ("s", "s_mov_b32 s48, s45")]
        else:
            g += [("s", "s_add_u32 s47, s47, 1024"), ("s", "s_add_u32 s48, s48, 16384")]
        g += [("s", f"s_add_u32 m0, s46, {(n % ring) * 2048}"),
              ("vm", f"buffer_load_dwordx4 {ar(ACT(n, 0), 4)}, v2, s[12:15], s47 offen", ("a", n)),
              ("vm", f"buffer_load_dwordx4 v4, s[8:11], s48 offen lds", ("w", n)),
              ("vm", f"buffer_load_dwordx4 v5, s[8:11], s48 offen offset:1024 lds", ("w", n)),
              ("vm", f"buffer_load_dwordx4 {ar(ACT(n, 1), 4)}, v3, s[12:15], s47 offen", ("a", n))]
        return g
    for n in range(ring):
        for it in loads(n): emit(it)
    T()
    k.srd(16, 64, SIZE['x'])
    k.srd(24, 66, SIZE['w1'] if op else SIZE['b2'])
    k(f"""
    v_lshrrev_b32 v10, 5, v1
    v_bfe_u32 v11, v1, 2, 2
    v_lshl_add_u32 v10, v10, 2, v11
    v_lshlrev_b32 v10, 7, v10
    v_lshl_add_u32 v10, v12, 5, v10
    v_and_b32 v13, 3, v1
    v_lshl_add_u32 v10, v13, 3, v10
    v_add_u32 v10, s46, v10
    v_bfe_u32 v11, v1, 3, 1
    v_lshl_add_u32 v6, v11, 6, v10
    v_xor_b32 v11, 1, v11
    v_lshl_add_u32 v7, v11, 6, v10
    """)
    k(f"""
    v_and_b32 v10, 15, v1
    s_lshl_b32 s53, s40, 4
    v_add_u32 v10, s53, v10
    v_lshrrev_b32 v11, 4, v1
    v_lshlrev_b32 v8, 10, v10
    v_lshl_add_u32 v8, v11, 5, v8
    s_lshl_b32 s49, s41, 16
    s_lshl_b32 s53, s42, 7
    s_add_u32 s49, s49, s53
    v_lshlrev_b32 v9, 6, v11
    s_lshl_b32 s54, s42, 8
    s_add_u32 s54, s54, {WS_MOD}
    v_and_b32 v13, 31, v10
    v_lshlrev_b32 v13, 4, v13
    v_lshl_add_u32 v14, v11, 11, v13
    s_lshr_b32 s53, s40, 1
    s_lshl_b32 s53, s53, 13
    s_add_u32 s53, s53, 65536
    v_add_u32 v14, s53, v14
    v_lshl_add_u32 v15, v11, 10, v13
    v_add_u32 v16, s46, v2
    v_add_u32 v16, 65536, v16
    """)
    XR, VEC = 24, 192
    ep_loads = []
    if op:
        ep_loads += [("vm", f"buffer_load_dwordx4 v[{XR+4*j}:{XR+4*j+3}], v8, s[16:19], s49 offen offset:{16*j}", "ep") for j in range(2)]
        ep_loads.append(("s", "s_add_u32 s55, s54, 4096"))
        for vi, (sg, off) in enumerate(((55, 0), (55, 2048))):
            ep_loads += [("vm", f"buffer_load_dwordx4 v[{VEC+16*vi+4*j}:{VEC+16*vi+4*j+3}], v9, s[20:23], s{sg} offen offset:{off+16*j}", "ep") for j in range(4)]
        ep_loads.append(("s", "s_add_u32 s55, s54, 8192"))
        ep_loads += [("vm", f"buffer_load_dwordx4 v[{VEC+32+4*j}:{VEC+32+4*j+3}], v9, s[20:23], s55 offen offset:{16*j}", "ep") for j in range(4)]
    else:
        ep_loads.append(("s", f"s_add_u32 s55, s49, {WS_X1}"))
        ep_loads += [("vm", f"buffer_load_dwordx4 v[{XR+4*j}:{XR+4*j+3}], v8, s[20:23], s55 offen offset:{16*j}", "ep") for j in range(2)]
        ep_loads.append(("s", "s_add_u32 s55, s54, 10240"))
        ep_loads += [("vm", f"buffer_load_dwordx4 v[{VEC+4*j}:{VEC+4*j+3}], v9, s[20:23], s55 offen offset:{16*j}", "ep") for j in range(4)]
        ep_loads += [("s", "s_lshl_b32 s55, s42, 7"), ("v", "v_lshrrev_b32 v17, 1, v9")]
        ep_loads += [("vm", f"buffer_load_dwordx4 v[{VEC+16+4*j}:{VEC+16+4*j+3}], v17, s[24:27], s55 offen offset:{16*j}", "ep") for j in range(2)]

    side = []
    if op:
        k.srd(28, 68, SIZE['b1'])
        S = Side(k)
        U = 96
        S(f"""
        s_lshl_b32 s56, s52, 3
        s_add_u32 s56, s56, s50
        s_lshl_b32 s56, s56, 6
        s_lshl_b32 s57, s42, 3
        s_add_u32 s56, s56, s57
        s_lshl_b32 s57, s56, 1
        v_mul_u32_u24 v17, 5504, v0
        v_lshlrev_b32 v18, 3, v0
        s_mov_b32 s58, {WS_MOD + 6144}
        """)
        S.fn(lambda: k.vm("buffer_load_dwordx4 v[240:243], v17, s[24:27], s57 offen", "sj"))
        S.fn(lambda: k.vm("buffer_load_dwordx4 v[244:247], v17, s[24:27], s57 offen offset:2752", "sj"))
        S.fn(lambda: k.vm("buffer_load_dwordx2 v[248:249], v18, s[20:23], s58 offen", "sj"))
        S.fn(lambda: k.vm("buffer_load_dwordx2 v[250:251], v18, s[20:23], s58 offen offset:2048", "sj"))
        S("v_lshlrev_b32 v18, 1, v1")
        S.fn(lambda: k.vm("buffer_load_ushort v19, v18, s[28:31], s57 offen", "sj"))
        for _ in range(40): S("s_nop 0")
        S.fn(lambda: k.need(vm="sj"))
        for j in range(8):
            un = (lambda d, r: f"v_and_b32 v{d}, 0xffff0000, v{r}") if j % 2 else (lambda d, r: f"v_lshlrev_b32 v{d}, 16, v{r}")
            S(un(252, 240 + j // 2)); S(un(253, 244 + j // 2))
            S(f"v_mul_f32 v{U+j}, v250, v252\nv_mul_f32 v{U+8+j}, v248, v252\nv_add_f32 v{U+16+j}, v252, v253")
            S(f"v_fmac_f32 v{U+j}, v251, v253\nv_fmac_f32 v{U+8+j}, v249, v253")
        S("s_nop 1")
        for m in ("row_shr:1 row_mask:0xf bank_mask:0xf bound_ctrl:0", "row_shr:2 row_mask:0xf bank_mask:0xf bound_ctrl:0",
                  "row_shr:4 row_mask:0xf bank_mask:0xf bound_ctrl:0", "row_shr:8 row_mask:0xf bank_mask:0xf bound_ctrl:0",
                  "row_bcast:15 row_mask:0xa bank_mask:0xf", "row_bcast:31 row_mask:0xc bank_mask:0xf"):
            for j in range(24): S(f"v_add_f32_dpp v{U+j}, v{U+j}, v{U+j} {m}")
        S("s_lshl_b32 s58, s40, 7\ns_add_u32 s58, s58, 131072\nv_mov_b32 v17, s58")
        def wr():
            k("s_mov_b32 exec_lo, 0\ns_mov_b32 exec_hi, 0x80000000")
            for j in range(6): k.ds(f"ds_write_b128 v17, v[{U+4*j}:{U+4*j+3}] offset:{16*j}", "sjw")
            k("s_mov_b64 exec, -1")
        S.fn(wr)
        side = S.items


    WF = lambda n, b: 192 + (n % 2) * 8 + b * 4
    ACC = lambda b, s: (s * 2 + b) * 16
    def w_reads(n):
        L = [("fn", lambda: k.need(vm=("w", n)))]
        for b in range(2):
            for half in range(2):
                r = WF(n, b) + 2 * half
                L.append(("ds", f"ds_read_b64_tr_b16 a[{r}:{r+1}], v{6+b} offset:{(n % ring)*2048 + half*1024}", ("f", n, b)))
        return L
    for it in w_reads(0): emit(it)
    T()
    extra = list(ep_loads)
    for n in range(NST):
        nxt = w_reads(n + 1) if n + 1 < NST else []
        ref = loads(n - 1 + ring) if (n >= 1 and n - 1 + ring < NST) else []
        for m in range(4):
            b, s = m // 2, m % 2
            k.need(ds=("f", n, b), vm=("a", n))
            k.mfma(ar(ACC(b, s), 16), ar(WF(n, b), 4), ar(ACT(n, s), 4), "0" if n == 0 else None)
            while ref:
                it = ref.pop(0); emit(it)
                if it[0] == "vm": break
            if m == 0 and extra and n >= 2:
                while extra:
                    it = extra.pop(0); emit(it)
                    if it[0] == "vm": break
            if m >= 1:
                for _ in range(3 if m == 1 else 1):
                    if nxt: emit(nxt.pop(0))
            used = 0
            while side and used < 4 and n >= 2:
                it = side.pop(0)
                if it[0] == "gap":
                    if it[1] != "s_nop 0": k("s_nop 0")
                    break
                emit(it); used += 1
        assert not ref and not nxt
    assert not side and not extra, (len(side), len(extra))
    T()
    k("s_nop 7")
    for t in range(4):
        if t == 3: k("s_nop 3")
        for g in range(4): k.ds(f"ds_write_b128 v16, a[{16*t+4*g}:{16*t+4*g+3}] offset:{t*4096+g*1024}", "red")
    k.need(all_ds=True)
    k("s_barrier")
    R = 32
    for src in range(4):
        for j in range(4):
            k.ds(f"ds_read_b128 v[{R+16*src+4*j}:{R+16*src+4*j+3}], v14 offset:{src*16384 + (j//2)*1024 + (j%2)*512}", ("r", src))
    if op:
        ls = k.label("nosj")
        k(f"""
        s_cmp_lg_u32 s40, 0
        s_cbranch_scc1 {ls}
        s_cmp_ge_u32 s56, 1376
        s_cbranch_scc1 {ls}
        v_lshlrev_b32 v17, 2, v1
        v_add_u32 v17, 131072, v17
        """)
        for vi in range(3):
            for src in range(4): k(f"ds_read_b32 v{96+4*vi+src}, v17 offset:{src*128+vi*32}")
        k("s_waitcnt lgkmcnt(0)")
        for vi in range(3):
            a = 96 + 4 * vi
            k(f"""v_add_f32 v{a}, v{a}, v{a+1}
            v_add_f32 v{a+2}, v{a+2}, v{a+3}
            v_add_f32 v{a}, v{a}, v{a+2}
            v_cvt_pk_bf16_f32 v{a+1}, v{a}, v{a}
            v_lshlrev_b32 v{a+2}, 16, v{a+1}
            v_sub_f32 v{a+3}, v{a}, v{a+2}""")
        k(f"""
        v_lshlrev_b32 v19, 16, v19
        v_mov_b32 v112, v97
        v_cvt_pk_bf16_f32 v113, v99, v102
        v_cvt_pk_bf16_f32 v114, v102, v103
        v_mov_b32 v115, 0
        v_mov_b32 v116, v105
        v_cvt_pk_bf16_f32 v117, v107, v19
        v_lshrrev_b32 v118, 16, v19
        v_mov_b32 v119, 0
        s_lshr_b32 s57, s56, 5
        s_lshl_b32 s57, s57, 10
        s_and_b32 s58, s56, 31
        s_lshl_b32 s58, s58, 4
        s_add_u32 s57, s57, s58
        s_add_u32 s57, s57, {WS_UWT}
        s_mov_b64 exec, 0xff
        buffer_store_dwordx4 v[112:115], v2, s[20:23], s57 offen
        buffer_store_dwordx4 v[116:119], v2, s[20:23], s57 offen offset:512
        s_mov_b64 exec, -1
        {ls}:
        """)
    X = 128
    k.need(vm="ep")
    unpack8(k, X, XR); unpack8(k, X + 8, XR + 4)
    if not op:
        unpack8(k, 144, VEC + 16); unpack8(k, 152, VEC + 20)
    k.need(ds=("r", 1))
    for j in range(16): k(f"v_add_f32 v{R+j}, v{R+j}, v{R+16+j}")
    k.need(ds=("r", 3))
    for j in range(16): k(f"v_add_f32 v{R+32+j}, v{R+32+j}, v{R+48+j}")
    for j in range(16): k(f"v_add_f32 v{R+j}, v{R+j}, v{R+32+j}")
    if not op:
        for j in range(16): k(f"v_add_f32 v{R+j}, v{R+j}, v{144+j}")
    for j in range(16): k(f"v_fmac_f32 v{X+j}, v{VEC+j}, v{R+j}")
    for j in range(8): k(f"v_cvt_pk_bf16_f32 v{XR+j}, v{X+2*j}, v{X+2*j+1}")
    if not op:
        for j in range(2): k(f"buffer_store_dwordx4 v[{XR+4*j}:{XR+4*j+3}], v8, s[16:19], s49 offen offset:{16*j}")
    else:
        k(f"s_add_u32 s55, s49, {WS_X1}")
        for j in range(2): k(f"buffer_store_dwordx4 v[{XR+4*j}:{XR+4*j+3}], v8, s[20:23], s55 offen offset:{16*j}")
        unpack8(k, X, XR); unpack8(k, X + 8, XR + 4)
        G = 144; SBV = VEC + 16; G2 = VEC + 32
        for j in range(16): k(f"v_mul_f32 v{G+j}, v{X+j}, v{G2+j}")
        for j in range(8): k(f"v_cvt_pk_bf16_f32 v{160+j}, v{G+2*j}, v{G+2*j+1}")
        k(f"""
        s_lshl_b32 s55, s41, 1
        s_lshr_b32 s53, s40, 1
        s_add_u32 s55, s55, s53
        s_lshl_b32 s57, s55, 15
        s_lshl_b32 s53, s42, 12
        s_add_u32 s57, s57, s53
        s_add_u32 s57, s57, {WS_XG}
        buffer_store_dwordx4 v[160:163], v15, s[20:23], s57 offen
        buffer_store_dwordx4 v[164:167], v15, s[20:23], s57 offen offset:512
        """)
        S1 = 168
        k(f"""v_add_f32 v{S1}, v{X}, v{X+1}
        v_mul_f32 v{S1+1}, v{X}, v{X}
        v_add_f32 v{S1+2}, v{G}, v{G+1}
        v_mul_f32 v{S1+4}, v{G}, v{G}
        v_mul_f32 v{S1+5}, v{G}, v{G2}
        v_mul_f32 v{S1+6}, v{G}, v{SBV}""")
        for j in range(1, 16):
            if j > 1: k(f"v_add_f32 v{S1}, v{S1}, v{X+j}\nv_add_f32 v{S1+2}, v{S1+2}, v{G+j}")
            k(f"v_fmac_f32 v{S1+1}, v{X+j}, v{X+j}\nv_fmac_f32 v{S1+4}, v{G+j}, v{G+j}\nv_fmac_f32 v{S1+5}, v{G+j}, v{G2+j}\nv_fmac_f32 v{S1+6}, v{G+j}, v{SBV+j}")
        k("s_nop 1")
        for j in range(3): k(f"v_permlane32_swap_b32 v{S1+j}, v{S1+4+j}")
        for j in range(3): k(f"v_add_f32 v{S1+j}, v{S1+j}, v{S1+4+j}")
        for j in range(3): k(f"v_mov_b32 v{S1+4+j}, v{S1+j}")
        k("s_nop 1")
        for j in range(3): k(f"v_permlane16_swap_b32 v{S1+j}, v{S1+4+j}")
        for j in range(3): k(f"v_add_f32 v{S1+j}, v{S1+j}, v{S1+4+j}")
        k(f"""
        v_mov_b32 v{S1+3}, 0
        v_lshrrev_b32 v17, 5, v1
        v_lshl_add_u32 v17, v17, 9, v13
        s_lshl_b32 s57, s55, 13
        s_lshl_b32 s53, s42, 10
        s_add_u32 s57, s57, s53
        s_add_u32 s57, s57, {WS_STATS}
        s_mov_b32 exec_lo, 0xffff
        s_mov_b32 exec_hi, 0xffff
        buffer_store_dwordx4 v[{S1}:{S1+3}], v17, s[20:23], s57 offen
        s_mov_b64 exec, -1
        """)
    T()
    if ts: k("s_waitcnt vmcnt(0)")
    T()
    T.dump(20)
    k(f"{k.name}_end:")
    k("s_endpgm")
    return k

def gen_mlp1(ts=None):
    k = KT("mlp1_kernel", 240, 256, 98304, vgpr=256, agpr=256)
    T = Stamps(k, ts, slot=3)
    T()
    prologue_ids(k, 240)
    k(f"""
    s_load_dwordx2 s[60:61], s[0:1], {ARG['w1']}
    s_load_dwordx2 s[62:63], s[0:1], {ARG['ws']}
    s_and_b32 s50, s2, 7
    s_lshr_b32 s42, s2, 3
    s_lshl_b32 s41, s50, 1
    s_cmp_ge_u32 s42, 15
    s_cselect_b32 s51, 1, 0
    s_cselect_b32 s52, 15, 0
    s_add_u32 s41, s41, s51
    s_sub_u32 s42, s42, s52
    s_lshl_b32 s41, s41, 2
    s_add_u32 s41, s41, s40
    s_lshl_b32 s44, s41, 15
    s_add_u32 s44, s44, {WS_XG}
    s_mul_i32 s45, s42, 192
    s_mul_i32 s53, s40, {16*2752}
    s_add_u32 s45, s45, s53
    s_mul_i32 s46, s40, 3072
    v_lshlrev_b32 v2, 4, v1
    s_mov_b32 s53, 43691
    s_mov_b32 s54, 2752
    """)
    for i in range(3):
        k(f"""v_add_u32 v10, {64*i}, v1
        v_mul_lo_u32 v11, v10, s53
        v_lshrrev_b32 v11, 19, v11
        v_mul_u32_u24 v12, 12, v11
        v_sub_u32 v12, v10, v12
        v_mul_lo_u32 v11, v11, s54
        v_lshl_add_u32 v11, v12, 4, v11
        v_subrev_u32 v{4+i}, {1024*i}, v11""")
    k("s_waitcnt lgkmcnt(0)")
    k.srd(8, 60, SIZE['w1']); k.srd(20, 62, WS_SIZE)
    for c in range(8):
        k(f"s_add_u32 m0, s46, {c*12288}")
        k(f"s_add_u32 s47, s45, {c*64*2752}")
        for i in range(3): k.vm(f"buffer_load_dwordx4 v{4+i}, s[8:11], s47 offen offset:{i*1024} lds", ("w", c))
        k(f"s_add_u32 s48, s44, {c*4096}")
        for q in range(4): k.vm(f"buffer_load_dwordx4 {ar(16*c+4*q, 4)}, v2, s[20:23], s48 offen offset:{q*1024}", ("x", 4*c+q))
    T()
    k(f"""
    s_lshl_b32 s47, s41, 13
    s_add_u32 s47, s47, {WS_STATS}
    s_add_u32 s48, s47, 4096
    v_lshlrev_b32 v10, 5, v1
    s_mov_b32 s49, {WS_MOD + 6144}
    s_mul_i32 s53, s42, 3072
    s_add_u32 s53, s53, {WS_UWT}
    v_lshrrev_b32 v11, 5, v1
    v_bfe_u32 v12, v1, 2, 2
    v_lshl_add_u32 v11, v11, 3, v12
    v_mul_u32_u24 v11, 192, v11
    v_bfe_u32 v12, v1, 4, 1
    v_lshl_add_u32 v11, v12, 5, v11
    v_and_b32 v12, 3, v1
    v_lshl_add_u32 v7, v12, 3, v11
    """)
    small = []
    for j in range(4): small.append(("vm", f"buffer_load_dwordx4 v[{96+4*j}:{99+4*j}], v10, s[20:23], s49 offen offset:{(j//2)*2048+(j%2)*16}", "sm"))
    for j in range(8): small.append(("vm", f"buffer_load_dwordx4 v[{64+4*j}:{67+4*j}], v2, s[20:23], s{47+j//4} offen offset:{(j%4)*1024}", "sm"))
    for b in range(3): small.append(("vm", f"buffer_load_dwordx4 a[{160+4*b}:{163+4*b}], v2, s[20:23], s53 offen offset:{b*1024}", "sm"))
    S = Side(k)
    S.fn(lambda: k.need(vm="sm"))
    SBV, G2 = 96, 104
    C = 112
    S(f"v_add_f32 v{C}, v{G2}, v{G2+1}\nv_mul_f32 v{C+1}, v{G2}, v{G2}\nv_mul_f32 v{C+2}, v{G2}, v{SBV}\nv_add_f32 v{C+3}, v{SBV}, v{SBV+1}\nv_mul_f32 v{C+4}, v{SBV}, v{SBV}")
    for j in range(1, 8):
        if j > 1: S(f"v_add_f32 v{C}, v{C}, v{G2+j}\nv_add_f32 v{C+3}, v{C+3}, v{SBV+j}")
        S(f"v_fmac_f32 v{C+1}, v{G2+j}, v{G2+j}\nv_fmac_f32 v{C+2}, v{G2+j}, v{SBV+j}\nv_fmac_f32 v{C+4}, v{SBV+j}, v{SBV+j}")
    for j in range(1, 8):
        for i in range(3): S(f"v_add_f32 v{64+i}, v{64+i}, v{64+4*j+i}")
    for m in ("quad_perm:[1,0,3,2]", "quad_perm:[2,3,0,1]", "row_half_mirror", "row_mirror"):
        for i in range(5): S(f"v_add_f32_dpp v{C+i}, v{C+i}, v{C+i} {m} row_mask:0xf bank_mask:0xf")
    for sw in ("v_permlane16_swap_b32", "v_permlane32_swap_b32"):
        for i in range(5): S(f"v_mov_b32 v{96+i}, v{C+i}")
        S("s_nop 1")
        for i in range(5): S(f"{sw} v{C+i}, v{96+i}")
        for i in range(5): S(f"v_add_f32 v{C+i}, v{C+i}, v{96+i}")
    for i in range(3): S(f"v_mov_b32 v{68+i}, v{64+i}")
    S("s_nop 1")
    for i in range(3): S(f"v_permlane32_swap_b32 v{64+i}, v{68+i}")
    inv = f32(1 / 512)
    S(f"""
    v_mul_f32 v72, {inv}, v64
    v_mul_f32 v73, {inv}, v65
    v_fma_f32 v73, -v72, v72, v73
    v_add_f32 v73, {f32(1e-5)}, v73
    v_rsq_f32 v74, v73
    v_sqrt_f32 v75, v73
    v_fma_f32 v76, -v72, v{C}, v66
    v_fma_f32 v76, v76, v74, v{C+3}
    v_mul_f32 v76, {inv}, v76
    v_mul_f32 v77, v72, v{C+1}
    v_fma_f32 v77, -2.0, v69, v77
    v_fma_f32 v77, v77, v72, v68
    v_fma_f32 v78, -v72, v{C+2}, v70
    v_add_f32 v78, v78, v78
    v_fma_f32 v77, v77, v74, v78
    v_fma_f32 v77, v77, v74, v{C+4}
    v_mul_f32 v77, {inv}, v77
    v_fma_f32 v77, -v76, v76, v77
    v_add_f32 v77, {f32(1e-5)}, v77
    v_rsq_f32 v78, v77
    v_sqrt_f32 v79, v77
    v_mul_f32 v80, v76, v75
    v_mul_f32 v120, v74, v78
    v_mul_f32 v81, v75, v79
    v_cmp_gt_u32 s[56:57], 32, v1
    v_sub_f32 v72, 0, v72
    v_sub_f32 v80, 0, v80
    v_cndmask_b32 v82, v80, v72, s[56:57]
    v_cndmask_b32 v83, v81, v75, s[56:57]
    v_cvt_pk_bf16_f32 v84, v82, v83
    v_lshlrev_b32 v85, 16, v84
    v_and_b32 v86, 0xffff0000, v84
    v_sub_f32 v87, v82, v85
    v_sub_f32 v88, v83, v86
    v_cvt_pk_bf16_f32 v124, v85, v87
    v_mov_b32 v125, v84
    v_cvt_pk_bf16_f32 v126, v88, v86
    v_mov_b32 v127, 0
    """)
    side = S.items
    W = AddrSet(k, [7])
    WF = lambda n, b: 128 + (n % 2) * 12 + b * 4
    ACC = lambda b: 16 + 16 * b
    def emit(item):
        if item[0] == "vm": k.vm(item[1], item[2])
        elif item[0] == "fn": item[1]()
        else: k(item[1])
    def w_reads(n):
        L = []
        for b in range(3):
            for half in range(2):
                def f(b=b, half=half):
                    o = W.off(n * 3072 + b * 64 + half * 768)
                    r = WF(n, b) + 2 * half
                    k.ds(f"ds_read_b64_tr_b16 a[{r}:{r+1}], v7 offset:{o}", ("f", n, b))
                L.append(("fn", f))
        return L
    k.need(vm=("w", 0)); k("s_barrier")
    T()
    for it in w_reads(0): emit(it)
    for n in range(32):
        nxt = w_reads(n + 1) if n < 31 else []
        for b in range(3):
            k.need(ds=("f", n, b), vm=("x", n))
            k.mfma(vr(ACC(b), 16), ar(WF(n, b), 4), ar(4 * n, 4), "0" if n == 0 else None)
            if b == 0 and n % 4 == 3 and n < 31:
                k.need(vm=("w", n // 4 + 1)); k("s_barrier")
            for _ in range(2):
                if nxt: emit(nxt.pop(0))
            if small and n >= 6: emit(small.pop(0))
            used = 0
            while side and used < 4 and n >= 20:
                it = side.pop(0)
                if it[0] == "gap":
                    if it[1] != "s_nop 0": k("s_nop 0")
                    break
                emit(it); used += 1
    for it in side:
        if it[0] == "gap": k(it[1])
        else: emit(it)
    k("s_nop 1")
    for b in range(3): k.mfma(vr(ACC(b), 16), ar(160 + 4 * b, 4), "v[124:127]")
    T()
    kk = 2 * math.sqrt(2 / math.pi) * math.log2(math.e)
    k(f"""
    s_mul_i32 s47, s41, {86*1024}
    s_mul_i32 s53, s42, 6144
    s_add_u32 s47, s47, s53
    s_add_u32 s47, s47, {WS_H1}
    s_add_u32 s48, s47, 4096
    s_mov_b32 s50, {f32(-kk * 0.044715)}
    v_mov_b32 v8, {f32(-kk)}
    s_nop 3
    """)
    for b in range(3):
        if b == 1: k(f"s_cmp_eq_u32 s42, 14\ns_cbranch_scc1 {k.name}_fin")
        a = ACC(b); t = 64
        for j in range(16): k(f"v_mul_f32 v{a+j}, v{a+j}, v120")
        for j in range(16): k(f"v_mul_f32 v{t+j}, v{a+j}, v{a+j}")
        for j in range(16): k(f"v_fma_f32 v{t+j}, v{t+j}, s50, v8")
        for j in range(16): k(f"v_mul_f32 v{t+j}, v{t+j}, v{a+j}")
        for j in range(16): k(f"v_exp_f32 v{t+j}, v{t+j}")
        for j in range(16): k(f"v_add_f32 v{t+j}, 1.0, v{t+j}")
        for j in range(16): k(f"v_rcp_f32 v{t+j}, v{t+j}")
        for j in range(16): k(f"v_mul_f32 v{a+j}, v{a+j}, v{t+j}")
        o = 96 + 8 * b
        for j in range(8): k(f"v_cvt_pk_bf16_f32 v{o+j}, v{a+2*j}, v{a+2*j+1}")
        for half in range(2):
            f = 2 * b + half
            k(f"buffer_store_dwordx4 v[{o+4*half}:{o+4*half+3}], v2, s[20:23], s{47+f//4} offen offset:{(f%4)*1024}")
    k(f"{k.name}_fin:")
    T()
    if ts: k("s_waitcnt vmcnt(0)")
    T()
    T.dump(20)
    k(f"{k.name}_end:")
    k("s_endpgm")
    return k
```

```python
import sys
from g_common import *
from g_kv import gen_kv
from g_attn import gen_attn
from g_tail import gen_t64, gen_mlp1
def full(path, ts=None, **kw):
    write_file(path, [gen_kv(ts=ts), gen_attn(ts=ts, **kw), gen_t64("oproj", ts=ts), gen_mlp1(ts=ts), gen_t64("mlp2", ts=ts)])
if __name__ == "__main__":
    full("full.s"); full("full_rt.s", ts="rt"); full("full_cy.s", ts="cy")
```
